```python
import torch

def _softmax(x, axis=-1):
    return torch.softmax(x, dim=axis)
def _gelu(x):
    return torch.nn.functional.gelu(x, approximate="tanh")
def _silu(x):
    return torch.nn.functional.silu(x)
def _sigmoid(x):
    return torch.sigmoid(x)
def _layernorm(x, axis=-1, eps=1e-5):
    m = x.mean(dim=axis, keepdim=True)
    v = x.var(dim=axis, keepdim=True, unbiased=False)
    return (x - m) / torch.sqrt(v + eps)
def _scatter_add(tgt, idx, src, axis=0):
    return tgt.clone().index_add_(axis, idx, src)
def _segment_sum(src, seg, n):
    out = torch.zeros((n,) + src.shape[1:], dtype=src.dtype)
    return out.index_add_(0, seg, src)
def _pad(x, pw):
    flat = tuple(v for pair in reversed(pw) for v in pair)
    return torch.nn.functional.pad(x, flat)

kernel_name = 'concat_heads__compressed_kv_cla__gqa_block_cached__decode'

def setup_inputs():

    _w = (lambda a: (lambda t: t.to(torch.bfloat16) if t.is_floating_point() else t)(torch.as_tensor(a)))
    def _A_setup():
        B, H, Sq, Sk, D, M = 1, 32, 1, 16384, 128, 512
        Dc = 4 * D
        return {
            "x": _w((lambda *s: torch.randn(*s, dtype=torch.bfloat16) * 3.2)(B, Sq, M)),
            "c_kv": _w((lambda *s: torch.randn(*s, dtype=torch.bfloat16) * 0.1)(B, Sk, Dc)),
            "w_q": _w((lambda *s: torch.randn(*s, dtype=torch.bfloat16) * 6.4)(M, H, D) * (M ** -0.5)),
            "w_uk": _w((lambda *s: torch.randn(*s, dtype=torch.bfloat16) * 6.4)(Dc, H, D) * (Dc ** -0.5)),
            "w_uv": _w((lambda *s: torch.randn(*s, dtype=torch.bfloat16) * 0.1)(Dc, H, D) * (Dc ** -0.5)),
            "w_o": _w((lambda *s: torch.randn(*s, dtype=torch.bfloat16) * 0.1)(H, D, M) * ((H * D) ** -0.5)),
        }
    _A_in = _A_setup()

    def _B_setup():
        B, Sq, D = 1, 1, 512
        Hq, Hkv, Sk, Dh = 32, 8, 16384, 128
        assert Hq % Hkv == 0, (Hq, Hkv)
        return {
            "x": _w((lambda *s: torch.randn(*s, dtype=torch.bfloat16) * 1.6)(B, Sq, D)),
            "k_cache": _w((lambda *s: torch.randn(*s, dtype=torch.bfloat16) * 1.6)(B, Hkv, Sk, Dh)),
            "v_cache": _w((lambda *s: torch.randn(*s, dtype=torch.bfloat16) * 0.05)(B, Hkv, Sk, Dh)),
            "wq": _w((lambda *s: torch.randn(*s, dtype=torch.bfloat16) * 1.6)(D, Hq * Dh) * (D ** -0.5)),
            "wo": _w((lambda *s: torch.randn(*s, dtype=torch.bfloat16) * 0.05)(Hq * Dh, D) * ((Hq * Dh) ** -0.5)),
        }
    _B_in = _B_setup()

    return {
        "A_x": _A_in["x"],
        "A_c_kv": _A_in["c_kv"],
        "A_w_q": _A_in["w_q"],
        "A_w_uk": _A_in["w_uk"],
        "A_w_uv": _A_in["w_uv"],
        "A_w_o": _A_in["w_o"],
        "B_x": _B_in["x"],
        "B_k_cache": _B_in["k_cache"],
        "B_v_cache": _B_in["v_cache"],
        "B_wq": _B_in["wq"],
        "B_wo": _B_in["wo"],
    }

def reference(A_x, A_c_kv, A_w_q, A_w_uk, A_w_uv, A_w_o, B_x, B_k_cache, B_v_cache, B_wq, B_wo):
    def _A_ref(x, c_kv, w_q, w_uk, w_uv, w_o):
        B, Sq, M = x.shape[0], x.shape[1], x.shape[2]
        Sk = c_kv.shape[1]
        H, D = w_q.shape[1], w_q.shape[2]
        q = torch.einsum("bqm,mhd->bhqd", x, w_q)
        k = torch.einsum("bkc,chd->bhkd", c_kv, w_uk)
        v = torch.einsum("bkc,chd->bhkd", c_kv, w_uv)
        scores = torch.einsum("bhqd,bhkd->bhqk", q, k) * (D ** -0.5)
        off = Sk - Sq
        qi = torch.arange(Sq)[:, None]
        kj = torch.arange(Sk)[None, :]
        cmask = kj <= (qi + off)
        scores = torch.where(cmask[None, None], scores, -1e9)
        p = _softmax(scores, axis=-1)
        ctx = torch.einsum("bhqk,bhkd->bhqd", p, v)
        return torch.einsum("bhqd,hdm->bqm", ctx, w_o)

    def _B_ref(x, k_cache, v_cache, wq, wo):
        B, Sq, D = x.shape
        Hq, Dh = 32, 128
        Hkv = k_cache.shape[1]
        rep = Hq // Hkv
        q = (lambda x, *d: x.permute(*d))((x @ wq).reshape(B, Sq, Hq, Dh), 0, 2, 1, 3)
        k = (lambda x, n, axis: torch.repeat_interleave(x, n, dim=axis))(k_cache, rep, axis=1)
        v = (lambda x, n, axis: torch.repeat_interleave(x, n, dim=axis))(v_cache, rep, axis=1)
        scores = torch.einsum("bhqd,bhkd->bhqk", q, k) * (Dh ** -0.5)
        p = _softmax(scores, axis=-1)
        o = torch.einsum("bhqk,bhkd->bhqd", p, v)
        return (lambda x, *d: x.permute(*d))(o, 0, 2, 1, 3).reshape(B, Sq, Hq * Dh) @ wo

    a = _A_ref(A_x, A_c_kv, A_w_q, A_w_uk, A_w_uv, A_w_o)
    b = _B_ref(B_x, B_k_cache, B_v_cache, B_wq, B_wo)
    return torch.concatenate([a, b], axis=-1)
```

```python
import re

def _regs(tok):
    tok = tok.strip()
    tok = tok.lstrip('-')
    m = re.fullmatch(r'abs\((.*)\)', tok)
    if m: tok = m.group(1)
    m = re.fullmatch(r'([vsa])\[(\d+):(\d+)\]', tok)
    if m: return {(m.group(1), i) for i in range(int(m.group(2)), int(m.group(3)) + 1)}
    m = re.fullmatch(r'([vsa])(\d+)', tok)
    if m: return {(m.group(1), int(m.group(2)))}
    if tok in ('vcc', 'vcc_lo', 'vcc_hi'): return {('vcc', 0)}
    if tok in ('exec', 'exec_lo', 'exec_hi'): return {('exec', 0)}
    if tok == 'm0': return {('m0', 0)}
    return set()

TRANS = ('v_exp_f32', 'v_log_f32', 'v_rcp_f32', 'v_rsq_f32', 'v_sqrt_f32', 'v_sin_f32', 'v_cos_f32')

class Ins:
    def __init__(self, text):
        self.text = text
        t = text.split(';')[0].strip()
        self.label = t.endswith(':')
        self.directive = t.startswith('.') and not self.label
        self.empty = (t == '')
        self.op = ''
        self.r = set(); self.w = set(); self.cls = 'none'
        if self.label or self.directive or self.empty: return
        parts = t.split(None, 1)
        op = parts[0]; self.op = op
        rest = parts[1] if len(parts) > 1 else ''
        ops = []; depth = 0; cur = ''
        for ch in rest:
            if ch in '[(': depth += 1
            if ch in '])': depth -= 1
            if ch == ',' and depth == 0: ops.append(cur); cur = ''
            else: cur += ch
        if cur.strip(): ops.append(cur)
        if ops:
            last = ops[-1].strip().split()
            ops[-1] = last[0] if last else ''
            self.mods = last[1:]
        else: self.mods = []
        self.ops = ops
        R = lambda i: _regs(ops[i]) if i < len(ops) else set()
        allr = lambda lo: set().union(*[R(i) for i in range(lo, len(ops))]) if len(ops) > lo else set()
        self.dpp = ('_dpp' in op) or any(m.startswith(('row_', 'quad_perm')) for m in self.mods)
        if op.startswith('v_mfma'):
            self.cls = 'mfma'; self.w = R(0); self.ab = R(1) | R(2); self.c = R(3); self.r = self.ab | self.c
            self.passes = 8 if '32x32x16' in op else 4
        elif op.startswith('v_'):
            self.cls = 'valu'
            if op.startswith('v_permlane'):
                self.w = R(0) | R(1); self.r = R(0) | R(1)
            elif op.startswith('v_cmp'):
                self.w = R(0); self.r = allr(1)
            elif op.startswith(('v_add_co', 'v_addc_co', 'v_sub_co')):
                self.w = R(0) | R(1); self.r = allr(2)
            else:
                self.w = R(0); self.r = allr(1)
                if op.startswith(('v_fmac', 'v_dot2c')) or self.dpp: self.r |= R(0)
                if op.startswith('v_cndmask') and len(ops) == 4: pass
        elif op.startswith('ds_'):
            self.cls = 'ds'
            if op.startswith(('ds_read', 'ds_bpermute', 'ds_permute', 'ds_swizzle')): self.w = R(0); self.r = allr(1)
            else: self.r = allr(0)
        elif op.startswith(('buffer_', 'global_')):
            self.cls = 'vmem'
            self.lds = 'lds' in self.mods
            if 'load' in op and not self.lds: self.w = R(0); self.r = allr(1)
            else: self.r = allr(0)
            self.store = 'store' in op
            self.wide = self.store and (op.endswith('x4') or op.endswith('x3'))
            if self.wide:
                self.data = R(0) if op.startswith('buffer_') else R(1)
            if self.lds: self.r |= {('m0', 0)}
        elif op.startswith('s_'):
            self.cls = 'salu'
            if op.startswith(('s_cbranch', 's_branch', 's_endpgm', 's_setpc')): self.cls = 'branch'
            elif op.startswith(('s_cmp', 's_waitcnt', 's_nop', 's_barrier', 's_sleep', 's_setprio', 's_bitcmp')): self.r = allr(0)
            else: self.w = R(0); self.r = allr(1)
            if 'saveexec' in op: self.w |= {('exec', 0)}
        else:
            raise ValueError('unknown op ' + text)
    def states(self):
        if self.op == 's_nop': return int(self.ops[0], 0) + 1
        return 1

def need(p, c):
    n = 0
    vw = {x for x in p.w if x[0] in 'va'}
    sw = {x for x in p.w if x[0] in ('s', 'vcc')}
    if p.cls == 'valu':
        if c.cls == 'mfma' and vw & c.r: n = max(n, 2)
        if c.cls == 'valu' and c.dpp and vw & c.r: n = max(n, 2)
        if c.cls == 'valu' and c.op.startswith('v_permlane') and vw & c.r: n = max(n, 2)
        if c.cls == 'valu' and c.op.startswith(('v_readfirstlane', 'v_readlane')) and vw & c.r: n = max(n, 1)
        if p.op.startswith(TRANS) and c.cls in ('valu', 'mfma') and vw & c.r: n = max(n, 1 if c.cls == 'valu' else 2)
        if sw:
            rr = set(c.r)
            if c.cls == 'valu' and c.op.startswith(('v_cndmask', 'v_addc_co')): rr |= {('vcc', 0)} if not any(o.strip().startswith('s[') for o in c.ops[3:]) else set()
            if c.cls == 'valu' and sw & rr: n = max(n, 2)
            if c.cls == 'vmem' and sw & c.r: n = max(n, 5)
            if c.cls == 'branch' and 'vcc' in c.op and ('vcc', 0) in sw: n = max(n, 1)
            if c.cls == 'salu' and sw & c.r: n = max(n, 1)
        if ('exec', 0) in p.w: n = max(n, 5)
    if p.cls == 'mfma':
        big = 8 if p.passes == 4 else 12
        if c.cls == 'mfma':
            if p.w & c.ab: n = max(n, big)
            if p.w & c.c:
                if not (p.w == c.c and p.passes == c.passes): n = max(n, big - 2)
            elif p.w & c.w: n = max(n, big)
        elif c.cls in ('valu', 'ds', 'vmem') and p.w & (c.r | c.w): n = max(n, big)
        if c.cls == 'valu' and p.c & c.w: n = max(n, 3 if p.passes == 4 else 7)
    if p.cls == 'salu' and ('m0', 0) in p.w and c.cls == 'vmem' and c.lds: n = max(n, 1)
    if p.cls == 'vmem' and getattr(p, 'wide', False) and p.data & c.w: n = max(n, 2 if c.cls == 'valu' else 1)
    return n

def maxneed(p):
    if p.cls == 'mfma': return 8 if p.passes == 4 else 12
    if p.cls == 'valu':
        if any(x[0] in ('s', 'vcc', 'exec') for x in p.w): return 5
        return 2
    if p.cls == 'vmem' and getattr(p, 'wide', False): return 2
    if p.cls == 'salu' and ('m0', 0) in p.w: return 1
    return 0

def pad_hazards(lines):
    out = []; hist = []
    npad = 0
    def emit_nop(k):
        nonlocal npad
        while k > 0:
            m = min(k, 16); out.append(f's_nop {m-1}'); npad += 1
            for h in hist: h[1] += m
            k -= m
    for text in lines:
        i = Ins(text)
        if i.empty or i.directive:
            out.append(text); continue
        if i.label or i.cls == 'branch':
            k = 0
            for p, d in hist:
                k = max(k, maxneed(p) - d - (0 if i.label else 1), (need(p, i) - d) if not i.label else 0)
            if i.op == 's_endpgm': k = 0
            emit_nop(k)
            out.append(text)
            hist = []
            continue
        k = 0
        for p, d in hist: k = max(k, need(p, i) - d)
        emit_nop(k)
        out.append(text)
        st = i.states()
        for h in hist: h[1] += st
        hist = [h for h in hist if h[1] < 12]
        if maxneed(i) > 0: hist.append([i, 0])
    return out, npad

class Asm:
    def __init__(self):
        self.lines = []
        self.vm = 0
        self.vm_done = 0
        self._lab = 0
    def __call__(self, s):
        for ln in s.split('\n'):
            ln = ln.strip()
            if ln: self.lines.append(ln)
    def label(self, base):
        self._lab += 1
        return f'L_{base}_{self._lab}'
    def vm_reset(self): self.vm = 0; self.vm_done = 0
    def vmem(self, s):
        self(s); self.vm += 1; return self.vm
    def wait_vm(self, seq):
        if seq <= self.vm_done: return
        n = self.vm - seq
        assert 0 <= n <= 63, n
        self(f's_waitcnt vmcnt({n})'); self.vm_done = seq
    def throttle(self, depth):
        if self.vm - self.vm_done >= depth: self.wait_vm(self.vm - (depth - 1))
    def text(self):
        out, npad = pad_hazards(self.lines)
        return '\n'.join((x if (x.endswith(':') or x.startswith(('.', ';'))) else '    ' + x) for x in out) + '\n'
```

```python
import sys, struct
from asmlib import Asm
NAME = 'concat_heads__compressed_kv_cla__gqa_block_cached__decode_kernel'

QB, QL, STB, STA, OB, FB, FA, CA, STAMP = 0x0, 0x10000, 0x20000, 0x22000, 0x30000, 0x90000, 0xD0000, 0x200000, 0x400000
WSN = 0x800000
CSC = struct.unpack('<I', struct.pack('<f', 1.4426950408889634 * 128 ** -0.5))[0]
NINF = 0xff800000
SPIN = 1 << 20
MISC = 131072

P_AX, P_CKV, P_WQ, P_WUK, P_WUV, P_WO_A, P_BX, P_K, P_V, P_WQB, P_WOB, P_OUT, P_DBG, P_WS = [4 + 2 * i for i in range(14)]
S_WAVE, S_R4, S_G, S_J = 32, 33, 34, 35
R0, R1, R2, RWS, R4_, R5 = 36, 40, 44, 48, 52, 56
S_POLL = 64
S_LO, S_HI, S_C, S_SPIN = 80, 81, 82, 83
S_ST = 84

def sr(b, n=4): return f's[{b}:{b+n-1}]'
def vr(b, n=4): return f'v[{b}:{b+n-1}]'

class Cfg:
    DK = 2; DV0 = 3; DV = 4
    DA = 64
    stamps = False
    def __init__(self, **kw):
        for k, v in kw.items(): setattr(self, k, v)

def srd(a, r, ptr, nbytes):
    a(f's_mov_b32 s{r}, s{ptr}\ns_mov_b32 s{r+1}, s{ptr+1}\ns_mov_b32 s{r+2}, {nbytes}\ns_mov_b32 s{r+3}, 0x20000')

def stamp(a, cfg, k):
    if cfg.stamps: a(f's_memrealtime s[{S_ST+2*k}:{S_ST+2*k+1}]\ns_waitcnt lgkmcnt(0)')

def transpose(a, src, dst, seqs=None):
    for u in range(4):
        if seqs: a.wait_vm(seqs[2 * u + 1])
        for q in range(4):
            a(f'v_perm_b32 v{dst+8*q+u}, v{src+8*u+4+q}, v{src+8*u+q}, s{S_LO}')
            a(f'v_perm_b32 v{dst+8*q+4+u}, v{src+8*u+4+q}, v{src+8*u+q}, s{S_HI}')

def xlane(a, op, v, t):
    for sw in ('v_permlane16_swap_b32', 'v_permlane32_swap_b32'):
        a(f'v_mov_b32 v{t}, v{v}\n{sw} v{v}, v{t}\n{op} v{v}, v{v}, v{t}')

def smem_poll(a, ndw, off, mask, name):
    lp, dn = a.label(name), a.label(name + '_ok')
    a(f's_mov_b32 s{S_SPIN}, 0\n{lp}:')
    if ndw in (4, 8, 16):
        a(f's_load_dwordx{ndw} {sr(S_POLL, ndw)}, {sr(P_DBG, 2)}, {off} glc')
    elif ndw == 6:
        a(f's_load_dwordx4 {sr(S_POLL, 4)}, {sr(P_DBG, 2)}, {off} glc\ns_load_dwordx2 {sr(S_POLL+4, 2)}, {sr(P_DBG, 2)}, s61 glc')
    a('s_waitcnt lgkmcnt(0)')
    for i in range(1, ndw): a(f's_and_b32 s{S_POLL}, s{S_POLL}, s{S_POLL+i}')
    a(f's_and_b32 s{S_POLL}, s{S_POLL}, {mask}\ns_cmp_eq_u32 s{S_POLL}, {mask}\ns_cbranch_scc1 {dn}')
    a(f's_add_u32 s{S_SPIN}, s{S_SPIN}, 1\ns_cmp_lt_u32 s{S_SPIN}, {SPIN}\ns_cbranch_scc1 {lp}\n{dn}:')

def set_flag(a, voff, vtmp, val):
    a(f's_mov_b64 exec, 1\nv_mov_b32 v{vtmp}, {val}')
    a.vmem(f'global_store_byte v{voff}, v{vtmp}, {sr(P_DBG, 2)} sc1')
    a('s_mov_b64 exec, -1')

def gemv_out(a, D, vt, voff, soff):
    for e in range(4): a(f'v_cndmask_b32 v{vt+e}, v{D+4*e}, v{D+16+4*e}, s[100:101]')
    a('s_mov_b32 exec_hi, 0')
    a.vmem(f'buffer_store_dwordx4 {vr(vt)}, v{voff}, {sr(RWS)}, {soff} offen sc1')
    a('s_mov_b64 exec, -1')

def final_stage(a, cfg, base, outoff, sf):
    a(f'v_lshrrev_b32 v4, 3, v0\nv_lshlrev_b32 v4, 11, v4\nv_and_b32 v5, 7, v0\nv_lshl_add_u32 v4, v5, 4, v4')
    a(f's_lshl_b32 s60, s{sf}, 7\ns_add_u32 s60, s60, {base}')
    a(f's_lshl_b32 s61, s{sf}, 6\ns_add_u32 s61, s61, {outoff}\nv_lshl_add_u32 v5, v5, 3, s61')
    lp, dn = a.label('fin'), a.label('fin_ok')
    a(f's_mov_b32 s{S_SPIN}, 0\n{lp}:')
    a.vm_reset()
    sq = []
    for u in range(16):
        if u: a(f's_add_u32 s61, s60, {u*16384}')
        sq.append(a.vmem(f'buffer_load_dwordx4 {vr(64+4*u)}, v4, {sr(RWS)}, {"s60" if u == 0 else "s61"} offen sc1'))
    for u in range(16):
        a.wait_vm(sq[u]); b = 64 + 4 * u
        if u == 0:
            a(f'v_max3_u32 v6, v{b}, v{b+1}, v{b+2}\nv_max_u32 v6, v6, v{b+3}')
        else:
            a(f'v_max3_u32 v6, v6, v{b}, v{b+1}\nv_max3_u32 v6, v6, v{b+2}, v{b+3}')
            for e in range(4): a(f'v_add_f32 v{8+e}, v{64+e if u == 1 else 8+e}, v{b+e}')
    a(f'v_cmp_eq_u32 vcc, -1, v6\ns_cbranch_vccz {dn}')
    a(f's_add_u32 s{S_SPIN}, s{S_SPIN}, 1\ns_cmp_lt_u32 s{S_SPIN}, {SPIN}\ns_cbranch_scc1 {lp}\n{dn}:')
    for e in range(4): a(f'v_add_f32_dpp v{8+e}, v{8+e}, v{8+e} row_ror:8 row_mask:0xf bank_mask:0xf')
    for sw in ('v_permlane16_swap_b32', 'v_permlane32_swap_b32'):
        for e in range(4): a(f'v_mov_b32 v{12+e}, v{8+e}')
        for e in range(4): a(f'{sw} v{8+e}, v{12+e}')
        for e in range(4): a(f'v_add_f32 v{8+e}, v{8+e}, v{12+e}')
    a('v_cvt_pk_bf16_f32 v8, v8, v9\nv_cvt_pk_bf16_f32 v9, v10, v11')
    a('s_mov_b64 exec, 0xff')
    a(f'global_store_dwordx2 v5, v[8:9], {sr(P_OUT, 2)}')
    a('s_mov_b64 exec, -1')

Q, ACC, KB, VB = 28, 32, (64, 96, 128), (160, 192, 224)
L_MX, L_LS, L_OW, OWH, OWW = 1024, 1152, 2048, 528, 2112

def loads_blocks(a, srdr, voff, regs, blocks, depth, sbase='s62'):
    seqs = {}
    for b in blocks:
        seqs[b] = []
        for j in range(8):
            if j % 4 == 0: a(f's_add_u32 s63, {sbase}, {b*8192 + j*1024}')
            a.throttle(depth)
            seqs[b].append(a.vmem(f'buffer_load_dwordx4 {vr(regs[b]+4*j)}, v{voff}, {sr(srdr)}, s63 offen offset:{(j%4)*1024} nt'))
    return seqs

def b_qk(a, b, seqs):
    a.wait_vm(seqs[-1])
    for j in range(8): a(f'v_mfma_f32_16x16x32_bf16 {vr(ACC+4*j)}, {vr(KB[b]+4*j)}, {vr(Q)}, 0')
    S = KB[0] + 8 * b
    for j in range(8): a(f'v_add_f32_dpp v{S+j}, v{ACC+4*j+1}, v{ACC+4*j} row_shl:4 row_mask:0xf bank_mask:0xf')
    for j in range(8): a(f'v_add_f32_dpp v{ACC+4*j+2}, v{ACC+4*j+3}, v{ACC+4*j+2} row_shl:4 row_mask:0xf bank_mask:0xf')
    for j in range(8): a(f'v_add_f32_dpp v{S+j}, v{ACC+4*j+2}, v{S+j} row_shl:8 row_mask:0xf bank_mask:0xf')

def b_max_publish(a, nblk):
    S = KB[0]; n = 8 * nblk
    a(f'v_max3_f32 v4, v{S}, v{S+1}, v{S+2}')
    k = 3
    while k + 1 < n: a(f'v_max3_f32 v4, v4, v{S+k}, v{S+k+1}'); k += 2
    if k < n: a(f'v_max_f32 v4, v4, v{S+k}')
    xlane(a, 'v_max_f32', 4, 5)
    a(f'v_mul_f32 v4, s{S_C}, v4')
    a(f's_mov_b64 exec, 0xf\nds_write_b32 v6, v4 offset:{L_MX}\ns_mov_b64 exec, -1\ns_waitcnt lgkmcnt(0)')

def b_read_max(a):
    a(f'ds_read_b128 v[8:11], v7 offset:{L_MX}\nds_read_b128 v[12:15], v7 offset:{L_MX+16}\ns_waitcnt lgkmcnt(0)')
    a('v_max3_f32 v8, v8, v9, v10\nv_max3_f32 v12, v11, v12, v13\nv_max3_f32 v8, v8, v14, v15\nv_max_f32 v16, v8, v12')

def b_softmax(a, nblk):
    S = KB[0]; n = 8 * nblk
    for k in range(n): a(f'v_fma_f32 v{S+k}, v{S+k}, s{S_C}, -v16')
    for k in range(n): a(f'v_exp_f32 v{S+k}, v{S+k}')
    a(f'v_add_f32 v4, v{S}, v{S+1}\nv_add_f32 v5, v{S+2}, v{S+3}')
    for k in range(4, n, 2): a(f'v_add_f32 v4, v4, v{S+k}\nv_add_f32 v5, v5, v{S+k+1}')
    a('v_add_f32 v4, v4, v5')
    for b in range(nblk):
        for u in range(4): a(f'v_cvt_pk_bf16_f32 v{S+8*b+u}, v{S+8*b+2*u}, v{S+8*b+2*u+1}')
    xlane(a, 'v_add_f32', 4, 5)
    a(f's_mov_b64 exec, 0xf\nds_write_b32 v6, v4 offset:{L_LS}\ns_mov_b64 exec, -1\ns_waitcnt lgkmcnt(0)')

def b_pv(a, b, seqs, first):
    T = KB[2]
    transpose(a, VB[b], T, seqs)
    for i in range(8):
        a(f'v_mfma_f32_16x16x32_bf16 {vr(ACC+4*i)}, {vr(T+4*i)}, {vr(KB[0]+8*b)}, {"0" if first else vr(ACC+4*i)}')

def b_write_ow(a):
    a('s_mov_b32 exec_lo, 0x000f000f\ns_mov_b32 exec_hi, 0x000f000f')
    for i in range(8): a(f'ds_write_b128 v17, {vr(ACC+4*i)} offset:{L_OW + i*64}')
    a('s_mov_b64 exec, -1\ns_waitcnt lgkmcnt(0)')

def b_lane_setup(a):
    a('v_and_b32 v1, 3, v0\nv_lshlrev_b32 v1, 4, v1\nv_bfe_u32 v2, v0, 2, 2\nv_lshl_add_u32 v1, v2, 8, v1')
    a('v_lshrrev_b32 v3, 4, v0\nv_lshl_add_u32 v1, v3, 6, v1\nv_lshlrev_b32 v2, 4, v0')

def b_lane_setup2(a):
    a(f'v_and_b32 v7, 3, v0\nv_lshlrev_b32 v7, 5, v7\ns_lshl_b32 s60, s{S_WAVE}, 2\nv_add_u32 v6, s60, v7')
    a(f'v_and_b32 v17, 3, v0\nv_mul_u32_u24 v17, {OWH}, v17\nv_lshrrev_b32 v3, 4, v0\nv_lshl_add_u32 v17, v3, 4, v17')
    a(f's_mul_i32 s60, s{S_WAVE}, {OWW}\nv_add_u32 v17, s60, v17')

def b_gather_q(a, cfg, tmp):
    a(f's_mul_i32 s60, s{S_G}, 24\ns_add_u32 s60, s60, 64')
    smem_poll(a, 4, 's60', '0x01010101', 'qb')
    a('v_and_b32 v8, 3, v0\nv_lshlrev_b32 v8, 11, v8\nv_bfe_u32 v9, v0, 2, 2\nv_lshl_add_u32 v8, v9, 5, v8\nv_lshrrev_b32 v9, 4, v0\nv_lshl_add_u32 v8, v9, 7, v8')
    a(f's_lshl_b32 s60, s{S_G}, 13')
    sq = []
    for rq in range(4):
        for e in range(2):
            sq.append(a.vmem(f'buffer_load_dwordx4 {vr(tmp+8*rq+4*e)}, v8, {sr(RWS)}, s60 offen offset:{QB + rq*512 + e*16} sc1'))
    a.wait_vm(sq[-1])
    for k in range(8): a(f'v_add_f32 v{tmp+k}, v{tmp+k}, v{tmp+8+k}\nv_add_f32 v{tmp+16+k}, v{tmp+16+k}, v{tmp+24+k}')
    for k in range(8): a(f'v_add_f32 v{tmp+k}, v{tmp+k}, v{tmp+16+k}')
    for u in range(4): a(f'v_cvt_pk_bf16_f32 v{Q+u}, v{tmp+2*u}, v{tmp+2*u+1}')
    a(f'ds_write_b128 v2, {vr(Q)}\ns_waitcnt lgkmcnt(0)')

def b_stats_publish(a):
    a(f'ds_read_b128 v[8:11], v7 offset:{L_LS}\nds_read_b128 v[12:15], v7 offset:{L_LS+16}')
    a(f'v_lshlrev_b32 v4, 8, v0\ns_lshl_b32 s60, s{S_G}, 10\ns_lshl_b32 s61, s{S_J}, 3\ns_add_u32 s60, s60, s61\ns_add_u32 s60, s60, {STB}')
    a('s_waitcnt lgkmcnt(0)')
    a('v_add_f32 v8, v8, v9\nv_add_f32 v10, v10, v11\nv_add_f32 v12, v12, v13\nv_add_f32 v14, v14, v15')
    a('v_add_f32 v8, v8, v10\nv_add_f32 v12, v12, v14\nv_mov_b32 v18, v16\nv_add_f32 v19, v8, v12')
    a('s_mov_b64 exec, 0xf')
    s = a.vmem(f'buffer_store_dwordx2 v[18:19], v4, {sr(RWS)}, s60 offen sc1')
    a('s_mov_b64 exec, -1')
    a.wait_vm(s)
    set_flag(a, 20, 21, 3)

def gen_B(a, cfg):
    a(f's_lshr_b32 s{S_G}, s2, 5\ns_and_b32 s60, s2, 7\ns_lshl_b32 s{S_J}, s{S_R4}, 3\ns_add_u32 s{S_J}, s{S_J}, s60\ns_sub_u32 s{S_J}, s{S_J}, 8')
    a(f's_mul_i32 s60, s{S_J}, 21\ns_mul_i32 s61, s{S_J}, 22\ns_sub_u32 s61, s61, 16\ns_cmp_lt_u32 s{S_J}, 16\ns_cselect_b32 s60, s60, s61')
    a(f's_mul_i32 s61, s{S_WAVE}, 3\ns_add_u32 s60, s60, s61\ns_lshl_b32 s60, s60, 13\ns_lshl_b32 s61, s{S_G}, 22\ns_add_u32 s62, s60, s61')
    b_lane_setup(a)
    a('s_waitcnt lgkmcnt(0)')
    srd(a, R0, P_K, 32 << 20); srd(a, R1, P_V, 32 << 20); srd(a, RWS, P_WS, WSN)
    a(f's_cmp_eq_u32 s{S_WAVE}, 7\ns_cbranch_scc1 L_B7')
    a.vm_reset()
    sK = loads_blocks(a, R0, 1, KB, (0, 1, 2), cfg.DK)
    sV = loads_blocks(a, R1, 2, VB, (0,), cfg.DV0)
    b_lane_setup2(a)
    stamp(a, cfg, 1)
    a('s_barrier')
    a(f'ds_read_b128 {vr(Q)}, v2\ns_waitcnt lgkmcnt(0)')
    for b in range(3): b_qk(a, b, sK[b])
    b_max_publish(a, 3)
    a('s_barrier')
    b_read_max(a); b_softmax(a, 3)
    a('s_barrier')
    stamp(a, cfg, 2)
    a(f's_cmp_ge_u32 s{S_R4}, 2\ns_cselect_b32 s3, 1, 0\ns_cmp_lt_u32 s{S_WAVE}, 4\ns_cselect_b32 s3, s3, 0')
    srd(a, R2, P_WOB, 4 << 20); srd(a, R4_, P_WS, WSN)
    a(f's_cmp_eq_u32 s3, 1\ns_cselect_b32 s{R2+2}, s{R2+2}, 0\ns_cselect_b32 s{R4_+2}, s{R4_+2}, 0')
    sV.update(loads_blocks(a, R1, 2, VB, (1,), cfg.DV))
    b_pv(a, 0, sV[0], True)
    a('s_cmp_eq_u32 s3, 1\ns_cbranch_scc0 L_B_noflag')
    a(f's_mul_i32 s60, s{S_G}, 24\ns_add_u32 s60, s60, 64\ns_add_u32 s61, s60, 16')
    smem_poll(a, 6, 's60', '0x02020202', 'sb')
    a('L_B_noflag:')
    a(f's_sub_u32 s60, s{S_J}, 8\ns_and_b32 s101, s60, 3\ns_bfe_u32 s60, s60, 0x20002\ns_lshl_b32 s100, s{S_G}, 2\ns_add_u32 s100, s100, s60')
    a(f'v_and_b32 v18, 15, v0\nv_lshlrev_b32 v19, 3, v18\nv_and_b32 v20, 7, v0\nv_lshlrev_b32 v20, 3, v20\ns_lshl_b32 s60, s100, 8\ns_add_u32 s60, s60, {STB}')
    st1 = a.vmem(f'buffer_load_dwordx2 v[22:23], v19, {sr(R4_)}, s60 offen sc1')
    st2 = a.vmem(f'buffer_load_dwordx2 v[24:25], v20, {sr(R4_)}, s60 offen offset:128 sc1')
    sV.update(loads_blocks(a, R1, 2, VB, (2,), cfg.DV))
    a('v_bfe_u32 v3, v0, 4, 1\nv_lshlrev_b32 v3, 16, v3\nv_lshrrev_b32 v21, 5, v0\nv_lshl_add_u32 v3, v21, 10, v3\nv_lshl_add_u32 v3, v18, 4, v3')
    a(f's_lshl_b32 s60, s100, 17\ns_lshl_b32 s61, s101, 11\ns_add_u32 s60, s60, s61\ns_lshl_b32 s61, s{S_WAVE}, 8\ns_add_u32 s60, s60, s61')
    sW = []
    for jj in range(8):
        a(f's_add_u32 s63, s60, {(32*(jj>>2) + 8*(jj&3))*1024}')
        sW.append(a.vmem(f'buffer_load_dwordx4 {vr(KB[1]+4*jj)}, v3, {sr(R2)}, s63 offen nt'))
    b_pv(a, 1, sV[1], False)
    a.wait_vm(st2)
    a('v_max_f32 v8, v22, v24')
    for r in (8, 4, 2, 1): a(f'v_max_f32_dpp v8, v8, v8 row_ror:{r} row_mask:0xf bank_mask:0xf')
    a('v_sub_f32 v26, v22, v8\nv_sub_f32 v27, v24, v8\nv_exp_f32 v26, v26\nv_exp_f32 v27, v27')
    a('v_cmp_gt_u32 vcc, 8, v18\nv_cndmask_b32 v27, 0, v27, vcc\nv_mul_f32 v8, v26, v23\nv_fmac_f32 v8, v27, v25')
    for r in (8, 4, 2, 1): a(f'v_add_f32_dpp v8, v8, v8 row_ror:{r} row_mask:0xf bank_mask:0xf')
    a('v_rcp_f32 v8, v8\nv_mul_f32 v26, v26, v8\nv_mul_f32 v27, v27, v8')
    b_pv(a, 2, sV[2], False)
    b_write_ow(a)
    stamp(a, cfg, 3)
    a('s_barrier')
    a(f's_cmp_eq_u32 s3, 1\ns_cbranch_scc1 L_B_co')
    a(f's_and_b32 s60, s{S_WAVE}, 6\ns_cmp_eq_u32 s60, 4\ns_cbranch_scc0 L_fin')
    a(f's_and_b32 s60, s{S_WAVE}, 1\ns_lshl_b32 s60, s60, 1\nv_lshrrev_b32 v4, 5, v0\nv_add_u32 v4, s60, v4\nv_and_b32 v5, 31, v0\nv_lshlrev_b32 v5, 4, v5')
    a(f'v_mul_u32_u24 v8, {OWH}, v4\nv_add_u32 v8, v8, v5')
    for w in range(8): a(f'ds_read_b128 {vr(64+4*w)}, v8 offset:{L_OW + w*OWW}')
    a(f'v_mul_u32_u24 v4, {24*512}, v4\nv_add_u32 v4, v4, v5\ns_mul_i32 s60, s{S_G}, {4*24*512}\ns_lshl_b32 s61, s{S_J}, 9\ns_add_u32 s60, s60, s61\ns_add_u32 s60, s60, {OB}')
    for w in range(1, 8):
        a(f's_waitcnt lgkmcnt({7-w})')
        for e in range(4): a(f'v_add_f32 v{64+e}, v{64+e}, v{64+4*w+e}')
    a(f'buffer_store_dwordx4 v[64:67], v4, {sr(RWS)}, s60 offen sc1')
    stamp(a, cfg, 4)
    a('s_branch L_fin')
    a('L_B_co:')
    WT = VB[0]
    transpose(a, KB[1], WT, sW)
    a(f'v_lshlrev_b32 v4, 9, v18\nv_lshrrev_b32 v5, 4, v0\nv_lshl_add_u32 v4, v5, 5, v4\nv_and_b32 v8, 7, v0\nv_lshlrev_b32 v8, 9, v8\nv_lshl_add_u32 v8, v5, 5, v8')
    a(f's_mul_i32 s60, s100, {24*512}\ns_lshl_b32 s61, s101, 7\ns_add_u32 s60, s60, s61\ns_add_u32 s60, s60, {OB}\ns_add_u32 s61, s60, {16*512}')
    a(f's_lshl_b32 s62, s100, 2\ns_add_u32 s62, s62, s101\ns_lshl_b32 s62, s62, 11\ns_lshl_b32 s63, s{S_WAVE}, 9\ns_add_u32 s62, s62, s63\ns_add_u32 s62, s62, {FB}')
    a('v_lshlrev_b32 v9, 5, v18\nv_lshl_add_u32 v9, v5, 4, v9\ns_mov_b32 s100, 0xffff0000\ns_mov_b32 s101, 0xffff0000')
    lp, dn = a.label('co'), a.label('co_ok')
    a(f's_mov_b32 s{S_SPIN}, 0\n{lp}:')
    X = 64
    a(f'buffer_load_dwordx4 {vr(X)}, v4, {sr(RWS)}, s60 offen sc1\nbuffer_load_dwordx4 {vr(X+4)}, v4, {sr(RWS)}, s60 offen offset:16 sc1')
    a(f'buffer_load_dwordx4 {vr(X+8)}, v8, {sr(RWS)}, s61 offen sc1\nbuffer_load_dwordx4 {vr(X+12)}, v8, {sr(RWS)}, s61 offen offset:16 sc1')
    a('s_waitcnt vmcnt(2)')
    a(f'v_max3_u32 v10, v{X}, v{X+1}, v{X+2}\nv_max3_u32 v11, v{X+3}, v{X+4}, v{X+5}\nv_max3_u32 v10, v10, v{X+6}, v{X+7}')
    for k in range(8): a(f'v_mul_f32 v{X+16+k}, v26, v{X+k}')
    a('s_waitcnt vmcnt(0)')
    a(f'v_max3_u32 v11, v11, v{X+8}, v{X+9}\nv_max3_u32 v10, v10, v{X+10}, v{X+11}\nv_max3_u32 v11, v11, v{X+12}, v{X+13}\nv_max3_u32 v10, v10, v{X+14}, v{X+15}\nv_max_u32 v10, v10, v11')
    a(f'v_cmp_eq_u32 vcc, -1, v10\ns_cbranch_vccz {dn}')
    a(f's_add_u32 s{S_SPIN}, s{S_SPIN}, 1\ns_cmp_lt_u32 s{S_SPIN}, {SPIN}\ns_cbranch_scc1 {lp}\n{dn}:')
    stamp(a, cfg, 4)
    for k in range(8): a(f'v_fmac_f32 v{X+16+k}, v27, v{X+8+k}')
    for r in (8, 4, 2, 1):
        for k in range(8): a(f'v_add_f32_dpp v{X+16+k}, v{X+16+k}, v{X+16+k} row_ror:{r} row_mask:0xf bank_mask:0xf')
    for u in range(4): a(f'v_cvt_pk_bf16_f32 v{X+u}, v{X+16+2*u}, v{X+16+2*u+1}')
    for i in range(8): a(f'v_mfma_f32_16x16x32_bf16 {vr(ACC+4*i)}, {vr(X)}, {vr(WT+4*i)}, 0')
    gemv_out(a, ACC, 12, 9, 's62')
    stamp(a, cfg, 5)
    a('s_branch L_fin')

    a('L_B7:')
    a.vm_reset()
    a('s_setprio 2')
    a(f's_mul_i32 s60, s{S_G}, 24\ns_add_u32 s60, s60, s{S_J}\ns_add_u32 s60, s60, 64\nv_mov_b32 v20, s60')
    a(f's_cmp_eq_u32 s{S_R4}, 3\ns_cbranch_scc1 L_B7Y')
    srd(a, R2, P_WQB, 4 << 20); srd(a, R4_, P_BX, 1024)
    a(f's_and_b32 s101, s{S_J}, 3\ns_lshr_b32 s100, s{S_J}, 2\ns_lshl_b32 s60, s{S_G}, 2\ns_add_u32 s100, s100, s60')
    a('v_lshrrev_b32 v3, 4, v0\nv_and_b32 v4, 15, v0\nv_lshlrev_b32 v5, 16, v3\nv_lshl_add_u32 v5, v4, 4, v5\nv_lshlrev_b32 v8, 4, v3')
    a('s_lshl_b32 s60, s101, 8')
    sx = [a.vmem(f'buffer_load_dwordx4 {vr(224+4*t)}, v8, {sr(R4_)}, s60 offen offset:{t*64}') for t in range(4)]
    a('s_lshl_b32 s60, s101, 20\ns_lshl_b32 s61, s100, 8\ns_add_u32 s60, s60, s61')
    sw = []
    for t in range(4):
        for jj in range(8):
            a(f's_add_u32 s63, s60, {(32*t + jj)*8192}')
            sw.append(a.vmem(f'buffer_load_dwordx4 {vr(64+32*t+4*jj)}, v5, {sr(R2)}, s63 offen nt'))
    b7_clear(a)
    b_lane_setup2(a)
    a(f'v_mov_b32 v10, {NINF}\nv_mov_b32 v11, 0')
    a(f's_mov_b64 exec, 0xf\nds_write_b32 v6, v10 offset:{L_MX}\nds_write_b32 v6, v11 offset:{L_LS}\ns_mov_b64 exec, -1')
    for k in range(32): a(f'v_mov_b32 v{ACC+k}, 0')
    b_write_ow(a)
    for t in range(4):
        transpose(a, 64 + 32 * t, 192, sw[8*t:8*t+8])
        for i in range(8): a(f'v_mfma_f32_16x16x32_bf16 {vr(ACC+4*i)}, {vr(224+4*t)}, {vr(192+4*i)}, {vr(ACC+4*i)}')
    a(f's_lshl_b32 s60, s100, 11\ns_lshl_b32 s61, s101, 9\ns_add_u32 s62, s60, s61\ns_add_u32 s62, s62, {QB}')
    a('v_lshlrev_b32 v9, 5, v4\nv_lshl_add_u32 v9, v3, 4, v9\ns_mov_b32 s100, 0xffff0000\ns_mov_b32 s101, 0xffff0000')
    gemv_out(a, ACC, 12, 9, 's62')
    a.wait_vm(a.vm)
    set_flag(a, 20, 21, 1)
    stamp(a, cfg, 1)
    b_gather_q(a, cfg, 64)
    stamp(a, cfg, 2)
    a('s_barrier')
    a('s_barrier')
    b_read_max(a)
    a('s_barrier')
    b_stats_publish(a)
    stamp(a, cfg, 3)
    a(f's_cmp_eq_u32 s{S_R4}, 1\ns_cselect_b32 s3, 1, 0\ns_and_b32 s60, s2, 3\ns_cmp_eq_u32 s60, 0\ns_cselect_b32 s3, s3, 0\ns_cmp_eq_u32 s3, 1\ns_cbranch_scc1 L_B7F')
    a('s_barrier')
    a('s_branch L_fin')
    a('L_B7F:')
    for k in range(3): smem_poll(a, 16, 64 + 64 * k, '0x02020202', 'fb')
    a(f's_lshl_b32 s3, s{S_G}, 1\ns_bfe_u32 s60, s2, 0x10002\ns_add_u32 s3, s3, s60')
    a('s_barrier')
    stamp(a, cfg, 4)
    final_stage(a, cfg, FB, 1024, 3)
    stamp(a, cfg, 5)
    a('s_branch L_fin')
    a('L_B7Y:')
    a.vm_reset()
    sK = loads_blocks(a, R0, 1, KB, (0,), 64)
    sV = loads_blocks(a, R1, 2, VB, (0,), 64)
    b7_clear(a)
    b_lane_setup2(a)
    b_gather_q(a, cfg, 96)
    stamp(a, cfg, 2)
    a('s_barrier')
    b_qk(a, 0, sK[0]); b_max_publish(a, 1)
    a('s_barrier')
    b_read_max(a); b_softmax(a, 1)
    a('s_barrier')
    b_stats_publish(a)
    b_pv(a, 0, sV[0], True)
    b_write_ow(a)
    a('s_barrier')
    a('s_branch L_fin')

def b7_clear(a):
    for e in range(4): a(f'v_mov_b32 v{12+e}, -1')
    a(f'v_lshrrev_b32 v10, 5, v0\nv_mul_u32_u24 v10, {24*512}, v10\nv_and_b32 v11, 31, v0\nv_lshl_add_u32 v10, v11, 4, v10')
    a(f's_mul_i32 s60, s{S_G}, {4*24*512}\ns_lshl_b32 s61, s{S_J}, 9\ns_add_u32 s60, s60, s61\ns_add_u32 s60, s60, {OB}\ns_add_u32 s61, s60, {2*24*512}')
    a.vmem(f'buffer_store_dwordx4 v[12:15], v10, {sr(RWS)}, s60 offen sc1')
    a.vmem(f'buffer_store_dwordx4 v[12:15], v10, {sr(RWS)}, s61 offen sc1')
    a(f's_lshl_b32 s60, s{S_G}, 4\ns_add_u32 s60, s60, s{S_J}\ns_sub_u32 s60, s60, 8\ns_lshl_b32 s60, s60, 11\ns_add_u32 s60, s60, {FB}')
    a(f's_cmp_ge_u32 s{S_R4}, 2\ns_cselect_b32 s60, s60, {WSN}')
    a.vmem(f'buffer_store_dwordx4 v[12:15], v2, {sr(RWS)}, s60 offen sc1')
    a.vmem(f'buffer_store_dwordx4 v[12:15], v2, {sr(RWS)}, s60 offen offset:1024 sc1')

QOP, AAC, W1, W2, TT, STG = 32, 96, 128, 160, 192, 224
L_MXA, L_LA, L_PB = MISC, MISC + 512, MISC + 1024
CTP = 1040

def half_gemv(a, X, WT, D, out):
    for i in range(8): a(f'v_mfma_f32_16x16x32_bf16 {vr(D+4*i)}, {vr(X)}, {vr(WT+4*i)}, 0')
    for i in range(8): a(f'v_add_f32_dpp v{out+i}, v{D+4*i+1}, v{D+4*i} row_shl:8 row_mask:0xf bank_mask:0xf')

def wave_reduce_write(a, src, vaddr, off):
    a(f's_mov_b64 exec, 0xff\nds_write_b128 v{vaddr}, {vr(src)} offset:{off}\nds_write_b128 v{vaddr}, {vr(src+4)} offset:{off+16}\ns_mov_b64 exec, -1\ns_waitcnt lgkmcnt(0)')

def wave_reduce_read(a, vaddr, off, tmp, dst):
    for half in range(2):
        for w in range(4 * half, 4 * half + 4):
            a(f'ds_read_b128 {vr(tmp+8*w)}, v{vaddr} offset:{off+w*256}\nds_read_b128 {vr(tmp+8*w+4)}, v{vaddr} offset:{off+w*256+16}')
        if half == 0: a('s_waitcnt lgkmcnt(4)')
    a('s_waitcnt lgkmcnt(0)')
    for st in (32, 16, 8):
        for k in range(st): a(f'v_add_f32 v{tmp+k}, v{tmp+k}, v{tmp+st+k}')
    for u in range(4): a(f'v_cvt_pk_bf16_f32 v{dst+u}, v{tmp+2*u}, v{tmp+2*u+1}')

def a_dma(a, cfg, s_row, slot_expr):
    sq = []
    for jj in range(8):
        if jj % 4 == 0:
            a(f's_add_u32 s63, {s_row}, {jj*1024}\ns_add_u32 m0, {slot_expr}, {jj*1024}')
        a(f'v_xor_b32 v24, {(jj&3)*64}, v{22 + (jj>>2)}')
        sq.append(a.vmem(f'buffer_load_dwordx4 v24, {sr(R2)}, s63 offen offset:{(jj%4)*1024} nt lds'))
    return sq

def gen_A(a, cfg):
    SA, SH = S_G, S_J
    a('L_A:')
    a(f's_lshr_b32 s60, s2, 5\ns_lshl_b32 s60, s60, 3\ns_and_b32 s61, s2, 7\ns_add_u32 s{SA}, s60, s61\ns_lshr_b32 s{SH}, s{SA}, 1')
    a(f's_lshl_b32 s62, s{S_WAVE}, 19\ns_lshl_b32 s60, s{SA}, 7\ns_add_u32 s62, s62, s60')
    a('v_lshrrev_b32 v3, 4, v0\nv_and_b32 v18, 15, v0\nv_bfe_u32 v1, v0, 3, 1\nv_lshlrev_b32 v1, 18, v1\nv_lshl_add_u32 v1, v3, 16, v1\nv_and_b32 v4, 7, v0\nv_lshl_add_u32 v1, v4, 4, v1')
    a(f'v_and_b32 v5, 1, v0\nv_lshlrev_b32 v5, 6, v5\nv_lshl_add_u32 v5, v3, 4, v5\ns_lshl_b32 s61, s{S_WAVE}, 7')
    a('s_waitcnt lgkmcnt(0)')
    srd(a, R0, P_WQ, 4 << 20); srd(a, R4_, P_AX, 1024)
    a.vm_reset()
    sx = a.vmem(f'buffer_load_dwordx4 v[28:31], v5, {sr(R4_)}, s61 offen')
    sq = []
    for jj in range(8):
        a(f's_add_u32 s63, s62, {jj*8192}')
        sq.append(a.vmem(f'buffer_load_dwordx4 {vr(W1+4*jj)}, v1, {sr(R0)}, s63 offen nt'))
    srd(a, R1, P_WUK, 4 << 20)
    a('v_lshrrev_b32 v6, 5, v0\nv_lshlrev_b32 v6, 18, v6\nv_bfe_u32 v7, v0, 2, 2\nv_lshl_add_u32 v6, v7, 16, v6\nv_bfe_u32 v7, v0, 4, 1\nv_lshl_add_u32 v6, v7, 6, v6\nv_and_b32 v7, 3, v0\nv_lshl_add_u32 v6, v7, 4, v6')
    sk = []
    for jj in range(8):
        a(f's_add_u32 s63, s62, {jj*8192}')
        sk.append(a.vmem(f'buffer_load_dwordx4 {vr(W2+4*jj)}, v6, {sr(R1)}, s63 offen nt'))
    srd(a, RWS, P_WS, WSN); srd(a, R2, P_CKV, 16 << 20)
    a('v_lshlrev_b32 v2, 4, v0')
    for e in range(4): a(f'v_mov_b32 v{12+e}, -1')
    a(f's_lshl_b32 s60, s{SA}, 12\ns_lshl_b32 s61, s{S_WAVE}, 10\ns_add_u32 s60, s60, s61\ns_add_u32 s60, s60, {FA}\ns_cmp_lt_u32 s{S_WAVE}, 4\ns_cselect_b32 s60, s60, {WSN}')
    a.vmem(f'buffer_store_dwordx4 v[12:15], v2, {sr(RWS)}, s60 offen sc1')
    a(f's_and_b32 s60, s{S_WAVE}, 1\ns_lshl_b32 s60, s60, 5\nv_xor_b32 v22, s60, v2\ns_xor_b32 s60, s60, 48\nv_xor_b32 v23, s60, v2')
    a(f's_lshl_b32 s100, s{SA}, 18\ns_lshl_b32 s101, s{S_WAVE}, 13\ns_add_u32 s100, s100, s101')
    a(f'v_lshlrev_b32 v8, 5, v0\ns_lshl_b32 s60, s{S_WAVE}, 8\ns_add_u32 s60, s60, {MISC}\nv_add_u32 v8, s60, v8')
    transpose(a, W1, TT, sq)
    half_gemv(a, 28, TT, QOP, QOP + 32)
    wave_reduce_write(a, QOP + 32, 8, 0)
    stamp(a, cfg, 1)
    sd0 = a_dma(a, cfg, 's100', 's101')
    a('s_barrier')
    a(f'v_bfe_u32 v9, v0, 4, 1\nv_lshlrev_b32 v9, 7, v9\nv_lshl_add_u32 v9, v7, 5, v9\nv_add_u32 v9, {MISC}, v9')
    wave_reduce_read(a, 9, 0, QOP, 28)
    a('v_lshrrev_b32 v10, 5, v0\nv_bfe_u32 v11, v0, 2, 1\nv_cmp_eq_u32 vcc, v10, v11')
    for u in range(4): a(f'v_cndmask_b32 v{28+u}, 0, v{28+u}, vcc')
    a.wait_vm(sk[-1])
    for jj in range(8): a(f'v_mfma_f32_16x16x32_bf16 {vr(QOP+4*jj)}, {vr(W2+4*jj)}, v[28:31], 0')
    a('s_add_u32 s60, s100, 65536\ns_add_u32 s61, s101, 65536')
    S = QOP + 32
    for jj in range(8): a(f'v_add_f32_dpp v{S+jj}, v{QOP+4*jj+1}, v{QOP+4*jj} row_shl:1 row_mask:0xf bank_mask:0xf')
    for jj in range(8): a(f'v_add_f32_dpp v{QOP+4*jj+2}, v{QOP+4*jj+3}, v{QOP+4*jj+2} row_shl:1 row_mask:0xf bank_mask:0xf')
    for jj in range(8): a(f'v_add_f32_dpp v{S+jj}, v{QOP+4*jj+2}, v{S+jj} row_shl:2 row_mask:0xf bank_mask:0xf')
    for u in range(4): a(f'v_cvt_pk_bf16_f32 v{S+8+u}, v{S+2*u}, v{S+2*u+1}')
    a(f'v_bfe_u32 v10, v0, 2, 1\nv_lshlrev_b32 v10, 6, v10\nv_lshl_add_u32 v10, v3, 4, v10')
    a(f's_and_b32 s3, s{SA}, 1\ns_lshl_b32 s3, s3, 15\ns_lshl_b32 s63, s{SH}, 10\ns_add_u32 s3, s3, s63\ns_lshl_b32 s63, s{S_WAVE}, 7\ns_add_u32 s3, s3, s63\ns_add_u32 s3, s3, {QL}')
    a('s_mov_b32 exec_lo, 0x00110011\ns_mov_b32 exec_hi, 0x00110011')
    sp = a.vmem(f'buffer_store_dwordx4 {vr(S+8)}, v10, {sr(RWS)}, s3 offen sc1')
    a('s_mov_b64 exec, -1')
    sd1 = a_dma(a, cfg, 's60', 's61')
    srd(a, R0, P_WUV, 4 << 20)
    a.wait_vm(sp)
    a('s_barrier')
    a(f'v_mov_b32 v20, s{SA}')
    a(f's_cmp_eq_u32 s{S_WAVE}, 0\ns_cbranch_scc0 L_A_nf1')
    keep = a.vm
    set_flag(a, 20, 21, 1)
    a.vm = keep
    a('L_A_nf1:')
    stamp(a, cfg, 2)
    su = []
    for jj in range(8):
        a(f's_add_u32 s63, s62, {jj*8192}')
        su.append(a.vmem(f'buffer_load_dwordx4 {vr(W1+4*jj)}, v1, {sr(R0)}, s63 offen nt'))
    a(f's_cmp_eq_u32 s{S_WAVE}, 0\ns_cbranch_scc0 L_A_np1')
    smem_poll(a, 16, 0, '0x01010101', 'ql')
    a('L_A_np1:')
    a('s_barrier')
    stamp(a, cfg, 3)
    a(f's_lshl_b32 s60, s{S_WAVE}, 12\ns_add_u32 s60, s60, {QL}\ns_add_u32 s61, s60, 32768')
    sg = []
    for e in range(4):
        sg.append(a.vmem(f'buffer_load_dwordx4 {vr(TT+8*e)}, v2, {sr(RWS)}, s60 offen offset:{e*1024} sc1'))
        sg.append(a.vmem(f'buffer_load_dwordx4 {vr(TT+8*e+4)}, v2, {sr(RWS)}, s61 offen offset:{e*1024} sc1'))
    srd(a, R1, P_WO_A, 4 << 20)
    a('v_lshlrev_b32 v6, 13, v3\nv_lshl_add_u32 v6, v18, 4, v6')
    a(f's_lshl_b32 s60, s{SA}, 16\ns_lshr_b32 s61, s{S_WAVE}, 2\ns_lshl_b32 s61, s61, 15\ns_add_u32 s60, s60, s61\ns_and_b32 s61, s{S_WAVE}, 3\ns_lshl_b32 s61, s61, 8\ns_add_u32 s60, s60, s61\ns_add_u32 s61, s60, 4096')
    so = []
    for jj in range(8):
        so.append(a.vmem(f'buffer_load_dwordx4 {vr(W2+4*jj)}, v6, {sr(R1)}, {"s60" if jj < 4 else "s61"} offen offset:{(jj%4)*1024} nt'))
    a(f's_lshl_b32 s60, s{S_WAVE}, 12\ns_add_u32 s60, s60, {MISC}\ns_and_b32 s61, s{S_WAVE}, 3\ns_lshl_b32 s61, s61, 6\nv_xor_b32 v9, s61, v2\nv_add_u32 v9, s60, v9\ns_mov_b32 s60, 0xffff0000')
    for e in range(4):
        a.wait_vm(sg[2*e+1])
        for q in range(4):
            x, y = TT + 8*e + q, TT + 8*e + 4 + q
            a(f'v_lshlrev_b32 v10, 16, v{x}\nv_lshlrev_b32 v11, 16, v{y}\nv_and_b32 v{x}, s60, v{x}\nv_and_b32 v{y}, s60, v{y}')
            a(f'v_add_f32 v10, v10, v11\nv_add_f32 v{x}, v{x}, v{y}\nv_cvt_pk_bf16_f32 v{x}, v10, v{x}')
        a(f'v_xor_b32 v10, {e*16}, v9\nds_write_b128 v10, {vr(TT+8*e)} offset:{e*1024}')
    a('s_waitcnt lgkmcnt(0)')
    a('s_barrier')
    a(f's_lshr_b32 s60, s{S_WAVE}, 2\ns_lshl_b32 s60, s60, 14\ns_add_u32 s60, s60, {MISC}\nv_xor_b32 v9, v3, v18\nv_lshlrev_b32 v9, 4, v9\nv_lshl_add_u32 v9, v18, 10, v9\nv_add_u32 v9, s60, v9')
    for t4 in range(4):
        a(f'v_xor_b32 v10, {t4*64}, v9')
        for th in range(4): a(f'ds_read_b128 {vr(QOP+4*(4*th+t4))}, v10 offset:{th*256}')
        if t4 % 2 == 1: a('s_waitcnt lgkmcnt(0)')
    a(f'v_and_b32 v9, 3, v18\nv_lshlrev_b32 v9, 2, v9\nv_lshrrev_b32 v10, 2, v18\nv_sub_u32 v10, 0, v10\nv_and_or_b32 v9, v10, 3, v9\nv_xor_b32 v9, v9, v3\nv_lshlrev_b32 v9, 4, v9\nv_lshl_add_u32 v9, v18, 10, v9')
    a(f's_and_b32 s60, s{S_WAVE}, 3\ns_lshl_b32 s60, s60, 14\nv_add_u32 v12, s60, v9\nv_xor_b32 v13, 64, v12\nv_xor_b32 v14, 128, v12\nv_xor_b32 v15, 192, v12')
    a('v_bfe_u32 v9, v0, 2, 2\nv_lshrrev_b32 v10, 5, v0\nv_lshlrev_b32 v11, 13, v10\nv_lshl_add_u32 v11, v9, 10, v11')
    a('v_lshlrev_b32 v9, 2, v9\nv_lshlrev_b32 v10, 1, v10\nv_or_b32 v9, v9, v10')
    a(f'v_bfe_u32 v10, v0, 4, 1\nv_lshlrev_b32 v10, 1, v10\nv_bfe_u32 v4, v0, 1, 1\nv_or_b32 v10, v10, v4\ns_and_b32 s60, s{S_WAVE}, 1\ns_lshl_b32 s60, s60, 3\nv_or_b32 v10, s60, v10')
    a(f'v_xor_b32 v9, v9, v10\nv_lshl_add_u32 v11, v9, 4, v11\nv_and_b32 v9, 1, v0\nv_lshl_add_u32 v11, v9, 3, v11\ns_lshr_b32 s60, s{S_WAVE}, 1\ns_lshl_b32 s60, s60, 8\nv_add_u32 v4, s60, v11')
    a('v_xor_b32 v5, 48, v4\nv_add_u32 v5, 4096, v5\nv_xor_b32 v6, 64, v4\nv_xor_b32 v7, 64, v5')
    a(f's_lshr_b32 s60, s{S_WAVE}, 2\ns_lshl_b32 s60, s60, 8\ns_add_u32 s60, s60, {MISC}\nv_lshl_add_u32 v16, v18, 4, s60\nv_and_b32 v17, 31, v0\nv_lshlrev_b32 v17, 4, v17\nv_add_u32 v17, {MISC}, v17')
    a(f's_and_b32 s61, s{S_WAVE}, 3\ns_lshl_b32 s60, s61, 10\nv_lshrrev_b32 v9, 5, v0\nv_lshl_add_u32 v19, v9, 9, v16\nv_bfe_u32 v9, v0, 4, 1\nv_lshl_add_u32 v19, v9, 3, v19\nv_add_u32 v19, s60, v19')
    a(f's_lshl_b32 s61, s61, 2\nv_add_u32 v21, s61, v16\nv_add_u32 v25, {MISC}, v2')
    a(f'v_mov_b32 v26, {NINF}\nv_mov_b32 v27, {NINF}\nv_mov_b32 v28, 0')
    for k in range(32): a(f'v_mov_b32 v{AAC+k}, 0')
    a('s_barrier')
    stamp(a, cfg, 4)
    sdma = {}
    for R in range(4):
        if R >= 2:
            a.wait_vm(sdma[R][-1]); a('s_barrier')
        order = [(t4, th) for th in range(4) for t4 in range(4)]
        def rd(k):
            t4, th = order[k]; a(f'ds_read_b128 {vr(STG+4*(k%8))}, v{12+t4} offset:{th*256}')
        for k in range(8): rd(k)
        for k in range(16):
            left = min(7, 15 - k)
            a(f's_waitcnt lgkmcnt({left})')
            a(f'v_mfma_f32_16x16x32_bf16 v[8:11], {vr(STG+4*(k%8))}, {vr(QOP+4*k)}, {"0" if k == 0 else "v[8:11]"}')
            if k + 8 < 16: rd(k + 8)
        a('v_max3_f32 v29, v8, v9, v10\nv_max_f32 v29, v29, v11')
        xlane(a, 'v_max_f32', 29, 30)
        a(f'v_mul_f32 v29, s{S_C}, v29\ns_mov_b64 exec, 0xffff\nds_write_b32 v21, v29\ns_mov_b64 exec, -1\ns_waitcnt lgkmcnt(0)')
        a('s_barrier')
        a(f'ds_read_b128 {vr(STG)}, v16\nds_read_b128 {vr(STG+4)}, v17\ns_waitcnt lgkmcnt(1)')
        a(f'v_max3_f32 v29, v{STG}, v{STG+1}, v26\nv_max3_f32 v29, v{STG+2}, v{STG+3}, v29\nv_sub_f32 v30, v26, v29\nv_mov_b32 v26, v29\nv_exp_f32 v30, v30')
        for r in range(4): a(f'v_fma_f32 v{8+r}, v{8+r}, s{S_C}, -v29')
        for r in range(4): a(f'v_exp_f32 v{8+r}, v{8+r}')
        a('v_mul_f32 v28, v28, v30\nv_add_f32 v29, v8, v9\nv_add_f32 v30, v10, v11\nv_cvt_pk_bf16_f32 v8, v8, v9\nv_cvt_pk_bf16_f32 v9, v10, v11')
        a(f'ds_write_b64 v19, v[8:9] offset:1024\nv_add_f32 v28, v28, v29\nv_add_f32 v28, v28, v30\ns_waitcnt lgkmcnt(1)')
        a(f'v_max3_f32 v29, v{STG+4}, v{STG+5}, v27\nv_max3_f32 v29, v{STG+6}, v{STG+7}, v29\nv_sub_f32 v30, v27, v29\nv_mov_b32 v27, v29\nv_exp_f32 v30, v30')
        if R:
            for k in range(32): a(f'v_mul_f32 v{AAC+k}, v30, v{AAC+k}')
        a('s_waitcnt lgkmcnt(0)\ns_barrier')
        def rdu(u):
            b = TT + 12 * u
            a(f'ds_read_b128 {vr(b)}, v25 offset:{1024 + u*1024}')
            for ct in range(2):
                for e in range(2): a(f'ds_read_b64_tr_b16 {vr(b+4+4*ct+2*e, 2)}, v{4+2*ct+e} offset:{u*16384}')
        rdu(0); rdu(1); rdu(2)
        for u in range(4):
            b = TT + 12 * u
            a(f's_waitcnt lgkmcnt({[10, 10, 5, 0][u]})')
            for ct in range(2): a(f'v_mfma_f32_32x32x16_bf16 {vr(AAC+16*ct, 16)}, {vr(b+4+4*ct)}, {vr(b)}, {vr(AAC+16*ct, 16)}')
            if u == 0: rdu(3)
        for r in (4, 5, 6, 7, 12, 13, 14, 15): a(f'v_xor_b32 v{r}, 0x10000, v{r}')
        if R < 2:
            a('s_barrier')
            a(f's_add_u32 s60, s100, {(R+2)*65536}\ns_add_u32 s61, s101, {(R&1)*65536}')
            sdma[R + 2] = a_dma(a, cfg, 's60', 's61')
    stamp(a, cfg, 5)
    xlane(a, 'v_add_f32', 28, 30)
    a('s_mov_b64 exec, 0xffff\nds_write_b32 v21, v28 offset:512\ns_mov_b64 exec, -1')
    a(f'v_and_b32 v9, 31, v0\nv_mul_u32_u24 v9, {CTP}, v9\nv_lshrrev_b32 v10, 5, v0\nv_lshl_add_u32 v9, v10, 3, v9\ns_lshl_b32 s60, s{S_WAVE}, 7\nv_add_u32 v9, s60, v9')
    for ct in range(2):
        for q in range(4):
            b = AAC + 16 * ct + 4 * q
            a(f'v_cvt_pk_bf16_f32 v{b}, v{b}, v{b+1}\nv_cvt_pk_bf16_f32 v{b+1}, v{b+2}, v{b+3}\nds_write_b64 v9, {vr(b, 2)} offset:{ct*64 + q*16}')
    a(f's_mul_i32 s60, s{S_WAVE}, {4*CTP}\nv_add_u32 v9, s60, v2')
    a(f's_lshl_b32 s60, s{S_WAVE}, 18\ns_lshl_b32 s61, s{SA}, 10\ns_add_u32 s60, s60, s61\ns_add_u32 s60, s60, {CA}')
    a('s_waitcnt lgkmcnt(0)\ns_barrier')
    for e in range(4): a(f'ds_read_b128 {vr(TT+4*e)}, v9 offset:{e*CTP}')
    a(f'ds_read_b128 {vr(STG)}, v17 offset:512')
    for e in range(4):
        a(f's_waitcnt lgkmcnt({4-e})\ns_add_u32 s61, s60, {e*65536}')
        a.vmem(f'buffer_store_dwordx4 {vr(TT+4*e)}, v2, {sr(RWS)}, s61 offen sc1')
    a(f's_waitcnt lgkmcnt(0)\nv_add_f32 v10, v{STG}, v{STG+1}\nv_add_f32 v11, v{STG+2}, v{STG+3}\nv_add_f32 v11, v10, v11\nv_mov_b32 v10, v27\nv_lshlrev_b32 v9, 9, v0')
    a(f's_lshl_b32 s60, s{SA}, 3\ns_add_u32 s60, s60, {STA}\ns_cmp_eq_u32 s{S_WAVE}, 0\ns_cselect_b32 s60, s60, {WSN}')
    a('s_mov_b32 exec_hi, 0')
    a.vmem(f'buffer_store_dwordx2 v[10:11], v9, {sr(RWS)}, s60 offen sc1')
    a('s_mov_b64 exec, -1')
    a.wait_vm(a.vm)
    a('s_barrier')
    a(f's_cmp_eq_u32 s{S_WAVE}, 0\ns_cbranch_scc0 L_A_nf2')
    keep = a.vm
    set_flag(a, 20, 21, 3)
    a.vm = keep
    a('L_A_nf2:')
    stamp(a, cfg, 6)
    transpose(a, W1, QOP); transpose(a, W2, QOP + 32)
    a('v_and_b32 v9, 1, v0\nv_lshlrev_b32 v10, 8, v9\nv_lshl_add_u32 v10, v3, 6, v10')
    a('v_lshlrev_b32 v11, 4, v9\nv_lshl_add_u32 v11, v3, 2, v11')
    a('v_bfe_u32 v12, v0, 3, 1\nv_lshlrev_b32 v12, 15, v12\nv_lshl_add_u32 v12, v3, 13, v12\nv_and_b32 v13, 7, v0\nv_lshl_add_u32 v12, v13, 4, v12')
    a(f's_lshl_b32 s60, s{SH}, 9\ns_add_u32 s60, s60, {STA}\ns_lshl_b32 s61, s{SH}, 16\ns_lshl_b32 s62, s{S_WAVE}, 7\ns_add_u32 s61, s61, s62\ns_add_u32 s61, s61, {CA}\ns_add_u32 s62, s61, 4096')
    a(f's_cmp_eq_u32 s{S_WAVE}, 0\ns_cbranch_scc0 L_A_np2')
    smem_poll(a, 16, 0, '0x02020202', 'cx')
    a('L_A_np2:')
    a('s_barrier')
    a('s_waitcnt vmcnt(0)')
    a.vm_reset()
    ss = [a.vmem(f'buffer_load_dwordx4 {vr(W1+4*k)}, v10, {sr(RWS)}, s60 offen offset:{16*k} sc1') for k in range(4)]
    sg = [a.vmem(f'buffer_load_dwordx4 {vr(TT+4*jj)}, v12, {sr(RWS)}, {"s61" if jj < 4 else "s62"} offen offset:{(jj%4)*1024} sc1') for jj in range(8)]
    a.wait_vm(ss[-1])
    M = [W1 + 2 * k for k in range(8)]
    a(f'v_max3_f32 v14, v{M[0]}, v{M[1]}, v{M[2]}\nv_max3_f32 v15, v{M[3]}, v{M[4]}, v{M[5]}\nv_max3_f32 v14, v14, v{M[6]}, v{M[7]}\nv_max_f32 v14, v14, v15')
    a('v_max_f32_dpp v14, v14, v14 quad_perm:[1,0,3,2] row_mask:0xf bank_mask:0xf')
    xlane(a, 'v_max_f32', 14, 15)
    for k in range(8): a(f'v_sub_f32 v{M[k]}, v{M[k]}, v14')
    for k in range(8): a(f'v_exp_f32 v{M[k]}, v{M[k]}')
    a(f'v_mul_f32 v14, v{M[0]}, v{M[0]+1}')
    for k in range(1, 8): a(f'v_fmac_f32 v14, v{M[k]}, v{M[k]+1}')
    a('v_add_f32_dpp v14, v14, v14 quad_perm:[1,0,3,2] row_mask:0xf bank_mask:0xf')
    xlane(a, 'v_add_f32', 14, 15)
    a('v_rcp_f32 v14, v14')
    for k in range(8): a(f'v_mul_f32 v{M[k]}, v{M[k]}, v14')
    for u in range(4): a(f'v_cvt_pk_bf16_f32 v{28+u}, v{M[2*u]}, v{M[2*u+1]}')
    transpose(a, TT, STG, sg)
    half_gemv(a, 28, STG, AAC, W1)
    for u in range(4): a(f'v_cvt_pk_bf16_f32 v{W1+8+u}, v{W1+2*u}, v{W1+2*u+1}')
    for u in range(4): a(f'ds_bpermute_b32 v{28+u}, v11, v{W1+8+u}')
    a('s_waitcnt lgkmcnt(0)')
    half_gemv(a, 28, QOP, AAC, W1)
    a(f'v_lshlrev_b32 v8, 5, v0\ns_lshl_b32 s60, s{S_WAVE}, 8\ns_add_u32 s60, s60, {MISC}\nv_add_u32 v8, s60, v8')
    wave_reduce_write(a, W1, 8, 8192)
    a(f's_lshr_b32 s60, s{S_WAVE}, 2\ns_lshl_b32 s61, s60, 7\ns_add_u32 s61, s61, {MISC}\nv_lshl_add_u32 v9, v3, 5, s61')
    a(f's_lshl_b32 s62, s{SA}, 1\ns_add_u32 s62, s62, s60\ns_lshl_b32 s62, s62, 11\ns_and_b32 s63, s{S_WAVE}, 3\ns_lshl_b32 s63, s63, 9\ns_add_u32 s62, s62, s63\ns_add_u32 s62, s62, {FA}')
    a('v_lshlrev_b32 v10, 5, v18\nv_lshl_add_u32 v10, v3, 4, v10\ns_mov_b32 s100, 0xffff0000\ns_mov_b32 s101, 0xffff0000')
    a('s_barrier')
    wave_reduce_read(a, 9, 8192, W1, 28)
    for i in range(8): a(f'v_mfma_f32_16x16x32_bf16 {vr(AAC+4*i)}, v[28:31], {vr(QOP+32+4*i)}, 0')
    gemv_out(a, AAC, 12, 10, 's62')
    stamp(a, cfg, 7)
    a(f's_cmp_eq_u32 s{S_WAVE}, 0\ns_cselect_b32 s60, s{SA}, 99\ns_cmp_lt_u32 s60, 16\ns_cbranch_scc0 L_fin')
    a('s_waitcnt vmcnt(0)')
    final_stage(a, cfg, FA, 0, SA)
    if cfg.stamps: stamp(a, cfg, 1)
    a('s_branch L_fin')

def generate(cfg):
    a = Asm()
    hdr = open('concat_heads__compressed_kv_cla__gqa_block_cached__decode.s.ref').read().split('\n') if not getattr(cfg, 'nohdr', False) else []
    head = [l for l in hdr if l.startswith(';') and '@launch' not in l and not l.startswith('; Override') and not l.startswith('; grid=')]
    head.append('; @launch grid=(256,1,1) block=(512,1,1) lds=163840')
    a('.amdgcn_target "amdgcn-amd-amdhsa--gfx950"\n.text')
    a(f'.globl {NAME}\n.p2align 8\n.type {NAME},@function\n{NAME}:')
    stamp(a, cfg, 0)
    a('s_cmp_ge_u32 s2, 256\ns_cbranch_scc1 L_end')
    a('s_load_dwordx16 s[4:19], s[0:1], 0\ns_load_dwordx8 s[20:27], s[0:1], 64\ns_load_dwordx4 s[28:31], s[0:1], 96')
    a(f'v_lshrrev_b32 v1, 6, v0\nv_and_b32 v0, 63, v0\ns_bfe_u32 s{S_R4}, s2, 0x20003\nv_readfirstlane_b32 s{S_WAVE}, v1')
    a(f's_cmp_eq_u32 s{S_WAVE}, 6\ns_cbranch_scc0 L_nopf')
    a(f's_getpc_b64 s[60:61]\nL_pc:\ns_lshl_b32 s62, s{S_R4}, 13\nv_lshl_add_u32 v2, v0, 7, s62\nv_min_u32 v2, L_end-L_pc, v2\nglobal_load_dword v27, v2, s[60:61]\nL_nopf:')
    a(f's_mov_b32 s{S_LO}, 0x05040100\ns_mov_b32 s{S_HI}, 0x07060302\ns_mov_b32 s{S_C}, {CSC:#x}')
    a(f's_cmp_eq_u32 s{S_R4}, 0\ns_cbranch_scc1 L_A')
    gen_B(a, cfg)
    gen_A(a, cfg)
    a('L_fin:')
    if cfg.stamps:
        a(f's_memrealtime s[62:63]\ns_waitcnt lgkmcnt(0) vmcnt(0)')
        a(f's_lshl_b32 s60, s2, 3\ns_add_u32 s60, s60, s{S_WAVE}\ns_lshl_b32 s60, s60, 6\ns_add_u32 s60, s60, {STAMP}\nv_mov_b32 v1, 0')
        for k in range(8): a(f'v_mov_b32 v{4+k}, s{S_ST+2*k}')
        a('v_mov_b32 v12, s62\nv_mov_b32 v13, 0\nv_mov_b32 v14, 0\nv_mov_b32 v15, 0\ns_mov_b64 exec, 1')
        for k in range(3): a(f'buffer_store_dwordx4 {vr(4+4*k)}, v1, {sr(RWS)}, s60 offen offset:{16*k}')
    a('L_end:\ns_endpgm')
    a(f'.section .rodata,"a"\n.p2align 6\n.amdhsa_kernel {NAME}')
    kd = ['.amdhsa_next_free_vgpr 256', '.amdhsa_next_free_sgpr 102', '.amdhsa_accum_offset 256', '.amdhsa_group_segment_fixed_size 0',
          '.amdhsa_kernarg_size 112', '.amdhsa_user_sgpr_count 2', '.amdhsa_user_sgpr_kernarg_segment_ptr 1', '.amdhsa_system_sgpr_workgroup_id_x 1']
    for l in kd: a(l)
    a('.end_amdhsa_kernel')
    return '\n'.join(head) + '\n' + a.text()

if __name__ == '__main__':
    kw = {}
    out = 'concat_heads__compressed_kv_cla__gqa_block_cached__decode.s'
    for arg in sys.argv[1:]:
        if '=' in arg:
            k, v = arg.split('='); kw[k] = int(v)
        else: out = arg
    open(out, 'w').write(generate(Cfg(**kw)))
```
